```python
import torch

def _softmax(x, axis=-1):
    return torch.softmax(x, dim=axis)
def _gelu(x):
    return torch.nn.functional.gelu(x, approximate="tanh")
def _silu(x):
    return torch.nn.functional.silu(x)
def _sigmoid(x):
    return torch.sigmoid(x)
def _layernorm(x, axis=-1, eps=1e-5):
    m = x.mean(dim=axis, keepdim=True)
    v = x.var(dim=axis, keepdim=True, unbiased=False)
    return (x - m) / torch.sqrt(v + eps)
def _scatter_add(tgt, idx, src, axis=0):
    return tgt.clone().index_add_(axis, idx, src)
def _segment_sum(src, seg, n):
    out = torch.zeros((n,) + src.shape[1:], dtype=src.dtype)
    return out.index_add_(0, seg, src)
def _pad(x, pw):
    flat = tuple(v for pair in reversed(pw) for v in pair)
    return torch.nn.functional.pad(x, flat)

kernel_name = 'standalone__low_rank_proj_linformer__sampling'

def setup_inputs():

    _w = (lambda a: (lambda t: t.to(torch.bfloat16) if t.is_floating_point() else t)(torch.as_tensor(a)))
    B, H, Sq, Skv, Dh, R = 8, 32, 8, 2048, 128, 8
    return {
        "q": _w((lambda *s: torch.randn(*s, dtype=torch.bfloat16) * 0.8)(B, H, Sq, Dh)),
        "k": _w((lambda *s: torch.randn(*s, dtype=torch.bfloat16) * 0.8)(B, H, Skv, Dh)),
        "v": _w((lambda *s: torch.randn(*s, dtype=torch.bfloat16) * 0.05)(B, H, Skv, Dh)),
        "e_proj": _w((lambda *s: torch.randn(*s, dtype=torch.bfloat16) * 0.8)(R, Skv) * (Skv ** -0.5)),
        "f_proj": _w((lambda *s: torch.randn(*s, dtype=torch.bfloat16) * 0.05)(R, Skv) * (Skv ** -0.5)),
    }

def reference(q, k, v, e_proj, f_proj):
    B, H, Sq, Dh = q.shape
    kp = torch.einsum("rn,bhnd->bhrd", e_proj, k)
    vp = torch.einsum("rn,bhnd->bhrd", f_proj, v)
    scores = torch.einsum("bhqd,bhrd->bhqr", q, kp) * (Dh ** -0.5)
    p = _softmax(scores, axis=-1)
    o = torch.einsum("bhqr,bhrd->bhqd", p, vp)
    return o
```

```python
import argparse

NAME = "standalone__low_rank_proj_linformer__sampling_kernel"

HEADER = """; Kernarg layout for this problem (64 bytes, ptrs only, base s[0:1]):
"""


class Gen:
    def __init__(self):
        self.lines = []
        self.vm = []

    def e(self, s):
        self.lines.append("    " + s)

    def c(self, s):
        self.lines.append("    ; " + s)

    def label(self, s):
        self.lines.append(s + ":")

    def vload(self, s, tag):
        self.e(s)
        self.vm.append(tag)
        assert len(self.vm) <= 63, "vmcnt overflow"

    def vwait(self, *tags):
        last = -1
        for i, t in enumerate(self.vm):
            if t in tags:
                last = i
        if last < 0:
            return
        n = len(self.vm) - 1 - last
        self.e(f"s_waitcnt vmcnt({n})")
        self.vm = self.vm[last + 1:]


def vr(a, n=1):
    return f"v{a}" if n == 1 else f"v[{a}:{a + n - 1}]"


def build(nw=8, nb=4, order="kv", interleave=False, flags="nt", rot=0, stamps=False):
    T = 64 // nw
    g = Gen()
    e, c = g.e, g.c

    V_OFF, V_LANE, V_T0, V_T1 = 1, 2, 3, 4
    V_EFA = 6
    V_QOFF = 5
    TMP = 8
    QR = 16
    EF = 32
    ACCK = EF + 4 * T
    share_acc = order == "kv"
    ACCV = ACCK if share_acc else ACCK + 32
    BUF = ACCV + 32
    nv = BUF + 32 * nb
    SCR = None
    maxv = 512 // max(1, nw // 4)
    maxv = min(maxv, 256)
    if share_acc:
        SCR = nv
        nv += 32
    else:
        SCR = ACCK
    assert nv <= maxv, (nv, maxv)

    S_Q, S_K, S_V, S_E, S_F, S_O = 4, 6, 8, 10, 12, 14
    SRD_K, SRD_V, SRD_Q, SRD_O = 16, 20, 24, 28
    S_W, S_WB, S_TILE, S_SELL, S_SELH, S_TMP = 32, 33, 34, 35, 36, 37
    S_ROT = 38
    S_ST = 40
    S_WS = 60

    LDS_S = 0
    LDS_V = nw * 1024
    WSTR = 2304
    lds = LDS_V + nw * WSTR

    if order == "kv":
        seq = [("K", t) for t in range(T)] + [("V", t) for t in range(T)]
    elif order == "alt":
        nlead = min(nb, T)
        seq = []
        nv_early = T - nlead
        ki = vi = 0
        while ki < T or vi < nv_early:
            if ki < T:
                seq.append(("K", ki)); ki += 1
            if vi < nv_early and (vi + 1) * T <= ki * max(nv_early, 1) + T - 1:
                seq.append(("V", vi)); vi += 1
        while vi < T:
            seq.append(("V", vi)); vi += 1
    else:
        raise ValueError(order)
    assert len(seq) == 2 * T
    last_k = max(i for i, s in enumerate(seq) if s[0] == "K")
    sync_at = max(last_k, len(seq) - 1 - nb)

    nstamp = [0]

    def stamp():
        if not stamps:
            return
        i = nstamp[0]
        nstamp[0] += 1
        e(f"s_memrealtime s[{S_ST + 2 * i}:{S_ST + 2 * i + 1}]")

    g.label(NAME)
    e("s_cmp_ge_u32 s2, 256")
    e("s_cbranch_scc1 L_end")
    stamp()
    e("s_load_dwordx8 s[4:11], s[0:1], 0")
    e("s_load_dwordx4 s[12:15], s[0:1], 32")
    if stamps:
        e(f"s_load_dwordx2 s[{S_WS}:{S_WS + 1}], s[0:1], 56")
    e(f"v_lshrrev_b32 v{V_T0}, 6, v0")
    e(f"v_and_b32 v{V_LANE}, 63, v0")
    e(f"v_readfirstlane_b32 s{S_W}, v{V_T0}")
    e(f"v_lshrrev_b32 v{V_T0}, 4, v{V_LANE}")
    e(f"v_and_b32 v{V_T1}, 15, v{V_LANE}")
    e(f"v_lshlrev_b32 v{V_OFF}, 11, v{V_T0}")
    e(f"v_lshl_add_u32 v{V_OFF}, v{V_T1}, 4, v{V_OFF}")
    e(f"s_lshl_b32 s{S_TMP}, s2, 19")
    e(f"s_mov_b32 s{SRD_K + 2}, 0x80000")
    e(f"s_mov_b32 s{SRD_K + 3}, 0x20000")
    e(f"s_mov_b32 s{SRD_V + 2}, 0x80000")
    e(f"s_mov_b32 s{SRD_V + 3}, 0x20000")
    e(f"s_mov_b32 s{S_SELL}, 0x05040100")
    e(f"s_mov_b32 s{S_SELH}, 0x07060302")
    if interleave:
        e(f"s_lshl_b32 s{S_WB}, s{S_W}, 13")
        tstride = nw * 8192
    else:
        e(f"s_mul_i32 s{S_WB}, s{S_W}, {T * 8192}")
        tstride = 8192
    e("s_waitcnt lgkmcnt(0)")
    e(f"s_add_u32 s{SRD_K}, s{S_K}, s{S_TMP}")
    e(f"s_addc_u32 s{SRD_K + 1}, s{S_K + 1}, 0")
    e(f"s_add_u32 s{SRD_V}, s{S_V}, s{S_TMP}")
    e(f"s_addc_u32 s{SRD_V + 1}, s{S_V + 1}, 0")
    stamp()

    def issue_tile(idx):
        kind, t = seq[idx]
        b = BUF + 32 * (idx % nb)
        srd = SRD_K if kind == "K" else SRD_V
        e(f"s_add_u32 s{S_TILE}, s{S_WB}, {t * tstride}")
        for i in range(8):
            g.vload(f"buffer_load_dwordx4 {vr(b + 4 * i, 4)}, v{V_OFF}, s[{srd}:{srd + 3}], s{S_TILE} offen offset:{i * 256} {flags.split(',')[0 if kind == 'K' else -1]}".rstrip(), ("tile", idx))

    issue_tile(0)
    c("E/F operand addresses: lane (r'=l&15, g): (r'<8 ? e : f) + (r'&7)*4096 + g*16 + tile*64")
    e(f"v_cmp_gt_u32 vcc, 8, v{V_T1}")
    e(f"v_mov_b32 v{V_EFA}, s{S_F}")
    e(f"v_mov_b32 v{V_EFA + 1}, s{S_F + 1}")
    e(f"v_mov_b32 v{TMP}, s{S_E}")
    e(f"v_mov_b32 v{TMP + 1}, s{S_E + 1}")
    e(f"v_cndmask_b32 v{V_EFA}, v{V_EFA}, v{TMP}, vcc")
    e(f"v_cndmask_b32 v{V_EFA + 1}, v{V_EFA + 1}, v{TMP + 1}, vcc")
    e(f"v_and_b32 v{TMP}, 7, v{V_T1}")
    e(f"v_lshlrev_b32 v{TMP}, 12, v{TMP}")
    e(f"v_lshl_add_u32 v{TMP}, v{V_T0}, 4, v{TMP}")
    e(f"s_lshr_b32 s{S_TMP}, s{S_WB}, 7")
    e(f"v_add_u32 v{TMP}, s{S_TMP}, v{TMP}")
    e(f"v_add_co_u32 v{V_EFA}, vcc, v{V_EFA}, v{TMP}")
    e("s_nop 1")
    e(f"v_addc_co_u32 v{V_EFA + 1}, vcc, 0, v{V_EFA + 1}, vcc")
    for t in range(T):
        g.vload(f"global_load_dwordx4 {vr(EF + 4 * t, 4)}, {vr(V_EFA, 2)}, off offset:{t * tstride // 128}", ("ef", t))
    for idx in range(1, min(nb, len(seq))):
        issue_tile(idx)
    c("Q operand")
    e(f"s_lshl_b32 s{S_TMP}, s2, 11")
    e(f"s_add_u32 s{SRD_Q}, s{S_Q}, s{S_TMP}")
    e(f"s_addc_u32 s{SRD_Q + 1}, s{S_Q + 1}, 0")
    e(f"s_mov_b32 s{SRD_Q + 2}, 2048")
    e(f"s_mov_b32 s{SRD_Q + 3}, 0x20000")
    e(f"s_add_u32 s{SRD_O}, s{S_O}, s{S_TMP}")
    e(f"s_addc_u32 s{SRD_O + 1}, s{S_O + 1}, 0")
    e(f"s_mov_b32 s{SRD_O + 2}, 2048")
    e(f"s_mov_b32 s{SRD_O + 3}, 0x20000")
    e(f"v_lshlrev_b32 v{V_QOFF}, 8, v{V_T1}")
    e(f"v_lshl_add_u32 v{V_QOFF}, v{V_T0}, 6, v{V_QOFF}")
    for m in range(4):
        g.vload(f"buffer_load_dwordx4 {vr(QR + 4 * m, 4)}, v{V_QOFF}, s[{SRD_Q}:{SRD_Q + 3}], 0 offen offset:{m * 16}", ("q",))
    stamp()

    first = {"K": True, "V": True}
    for idx, (kind, t) in enumerate(seq):
        b = BUF + 32 * (idx % nb)
        acc = ACCK if kind == "K" else ACCV
        c(f"---- tile {idx}: {kind}{t}")
        g.vwait(("tile", idx), ("ef", t))
        if idx == 0:
            stamp()

        def perms(cc):
            sel = S_SELL if cc % 2 == 0 else S_SELH
            d = TMP + 4 * (cc % 2)
            for m in range(4):
                lo = b + 4 * (2 * m) + (cc >> 1)
                hi = b + 4 * (2 * m + 1) + (cc >> 1)
                e(f"v_perm_b32 v{d + m}, v{hi}, v{lo}, s{sel}")

        def mfma(cc):
            d = TMP + 4 * (cc % 2)
            a = acc + 4 * cc
            src = "0" if first[kind] else vr(a, 4)
            if kind == "K":
                e(f"v_mfma_f32_16x16x32_bf16 {vr(a, 4)}, {vr(d, 4)}, {vr(EF + 4 * t, 4)}, {src}")
            else:
                e(f"v_mfma_f32_16x16x32_bf16 {vr(a, 4)}, {vr(EF + 4 * t, 4)}, {vr(d, 4)}, {src}")

        perms(0)
        for cc in range(1, 8):
            perms(cc)
            mfma(cc - 1)
        if idx + nb < len(seq):
            issue_tile(idx + nb)
        else:
            e("s_nop 0")
        mfma(7)
        first[kind] = False

        if idx == last_k:
            c("partial scores S_w^T[r][q] = kp_w . Q^T")
            g.vwait(("q",))
            e("s_nop 7")
            if share_acc:
                dst = SCR
            else:
                assert seq.index(("V", 0)) < last_k
                dst = EF
            for m in range(4):
                d = TMP + 4 * (m % 2)
                for k in range(4):
                    e(f"v_cvt_pk_bf16_f32 v{d + k}, v{ACCK + 4 * (2 * k) + m}, v{ACCK + 4 * (2 * k + 1) + m}")
                e("s_nop 1")
                src = "0" if m == 0 else vr(dst, 4)
                e(f"v_mfma_f32_16x16x32_bf16 {vr(dst, 4)}, {vr(d, 4)}, {vr(QR + 4 * m, 4)}, {src}")
            e(f"s_lshl_b32 s{S_TMP}, s{S_W}, 10")
            e(f"v_lshlrev_b32 v{V_QOFF}, 4, v{V_LANE}")
            e(f"v_add_u32 v{V_QOFF}, s{S_TMP}, v{V_QOFF}")
            e("s_nop 5")
            e(f"ds_write_b128 v{V_QOFF}, {vr(dst, 4)} offset:{LDS_S}")
            e("s_nop 1")

        if idx == sync_at:
            c("score reduction over waves + softmax")
            e("s_waitcnt lgkmcnt(0)")
            e("s_barrier")
            e(f"v_and_b32 v{V_QOFF}, 7, v{V_LANE}")
            e(f"v_lshlrev_b32 v{V_QOFF}, 4, v{V_QOFF}")
            S0 = QR
            for w0 in range(0, nw, 4):
                for w in range(w0, w0 + 4):
                    for h in range(2):
                        e(f"ds_read_b128 {vr(SCR + 8 * (w - w0) + 4 * h, 4)}, v{V_QOFF} offset:{LDS_S + w * 1024 + h * 256}")
                e("s_waitcnt lgkmcnt(0)")
                for k in range(8):
                    e(f"v_add_f32 v{SCR + k}, v{SCR + k}, v{SCR + 8 + k}")
                    e(f"v_add_f32 v{SCR + 16 + k}, v{SCR + 16 + k}, v{SCR + 24 + k}")
                for k in range(8):
                    if w0 == 0:
                        e(f"v_add_f32 v{S0 + k}, v{SCR + k}, v{SCR + 16 + k}")
                    else:
                        e(f"v_add_f32 v{SCR + k}, v{SCR + k}, v{SCR + 16 + k}")
                        e(f"v_add_f32 v{S0 + k}, v{S0 + k}, v{SCR + k}")
            M = SCR
            e(f"v_max3_f32 v{M}, v{S0}, v{S0 + 1}, v{S0 + 2}")
            e(f"v_max3_f32 v{M}, v{M}, v{S0 + 3}, v{S0 + 4}")
            e(f"v_max3_f32 v{M}, v{M}, v{S0 + 5}, v{S0 + 6}")
            e(f"v_max_f32 v{M}, v{M}, v{S0 + 7}")
            c("scale * log2(e) = 128^-0.5 * 1.4426950408889634")
            e(f"s_mov_b32 s{S_TMP}, 0x3e0293ee")
            for k in range(8):
                e(f"v_sub_f32 v{S0 + k}, v{S0 + k}, v{M}")
            for k in range(8):
                e(f"v_mul_f32 v{S0 + k}, s{S_TMP}, v{S0 + k}")
            for k in range(8):
                e(f"v_exp_f32 v{S0 + k}, v{S0 + k}")
            e("s_nop 0")
            e(f"v_add_f32 v{M}, v{S0}, v{S0 + 1}")
            e(f"v_add_f32 v{M + 1}, v{S0 + 2}, v{S0 + 3}")
            e(f"v_add_f32 v{M + 2}, v{S0 + 4}, v{S0 + 5}")
            e(f"v_add_f32 v{M + 3}, v{S0 + 6}, v{S0 + 7}")
            e(f"v_add_f32 v{M}, v{M}, v{M + 1}")
            e(f"v_add_f32 v{M + 2}, v{M + 2}, v{M + 3}")
            e(f"v_add_f32 v{M}, v{M}, v{M + 2}")
            e(f"v_rcp_f32 v{M}, v{M}")
            e("s_nop 0")
            for k in range(8):
                e(f"v_mul_f32 v{S0 + k}, v{S0 + k}, v{M}")
            P = QR + 8
            for k in range(4):
                e(f"v_cvt_pk_bf16_f32 v{P + k}, v{S0 + 2 * k}, v{S0 + 2 * k + 1}")
            c("tail addresses")
            WA, RA, OA = QR + 12, QR + 13, QR + 14
            e(f"s_mul_i32 s{S_TMP}, s{S_W}, {WSTR}")
            e(f"v_and_b32 v{WA}, 1, v{V_T0}")
            e(f"v_lshlrev_b32 v{WA}, 3, v{WA}")
            e(f"v_lshl_add_u32 v{WA}, v{V_T1}, 4, v{WA}")
            e(f"v_add_u32 v{WA}, s{S_TMP}, v{WA}")
            e(f"v_and_b32 v{RA}, 7, v{V_T1}")
            e(f"v_mul_u32_u24 v{RA}, 288, v{RA}")
            e(f"v_lshrrev_b32 v{OA}, 3, v{V_T1}")
            e(f"v_lshl_add_u32 v{RA}, v{OA}, 4, v{RA}")
            e(f"v_mul_u32_u24 v{OA}, {WSTR}, v{V_T0}")
            e(f"v_add_u32 v{RA}, v{RA}, v{OA}")
            nblk = max(1, 8 // nw)
            e(f"s_lshl_b32 s{S_TMP}, s{S_W}, {5 + (nblk.bit_length() - 1)}")
            e(f"v_add_u32 v{RA}, s{S_TMP}, v{RA}")
            e(f"v_lshlrev_b32 v{OA}, 8, v{V_T1}")
            e(f"v_lshl_add_u32 v{OA}, v{V_T0}, 3, v{OA}")
            e(f"v_add_u32 v{OA}, s{S_TMP}, v{OA}")

    stamp()
    c("---- tail: bf16 partial vp -> LDS, reduce over waves with MFMA against P")
    P = QR + 8
    WA, RA, OA = QR + 12, QR + 13, QR + 14
    e("s_mov_b32 exec_lo, 0")
    e("s_nop 6")
    for cc in range(8):
        d = TMP + 2 * (cc % 4)
        e(f"v_cvt_pk_bf16_f32 v{d}, v{ACCV + 4 * cc}, v{ACCV + 4 * cc + 1}")
        e(f"v_cvt_pk_bf16_f32 v{d + 1}, v{ACCV + 4 * cc + 2}, v{ACCV + 4 * cc + 3}")
        e(f"ds_write_b64 v{WA}, {vr(d, 2)} offset:{LDS_V + cc * 288}")
    e("s_mov_b32 exec_lo, -1")
    e("s_waitcnt lgkmcnt(0)")
    e("s_barrier")
    nblk = max(1, 8 // nw)
    nm = nw // 4
    if nw > 8:
        e(f"s_cmp_ge_u32 s{S_W}, 8")
        e("s_cbranch_scc1 L_fin")
    for blk in range(nblk):
        for m in range(nm):
            e(f"ds_read_b128 {vr(BUF + 4 * (blk * nm + m), 4)}, v{RA} offset:{LDS_V + 4 * m * WSTR + blk * 32}")
    for blk in range(nblk):
        for m in range(nm):
            e(f"s_waitcnt lgkmcnt({nblk * nm - 1 - (blk * nm + m)})")
            src = "0" if m == 0 else vr(TMP + 4 * blk, 4)
            e(f"v_mfma_f32_16x16x32_bf16 {vr(TMP + 4 * blk, 4)}, {vr(BUF + 4 * (blk * nm + m), 4)}, {vr(P, 4)}, {src}")
    e("s_nop 7")
    for blk in range(nblk):
        o = TMP + 4 * blk
        e(f"v_cvt_pk_bf16_f32 v{o}, v{o}, v{o + 1}")
        e(f"v_cvt_pk_bf16_f32 v{o + 1}, v{o + 2}, v{o + 3}")
        e(f"buffer_store_dwordx2 {vr(o, 2)}, v{OA}, s[{SRD_O}:{SRD_O + 3}], 0 offen offset:{blk * 32}")
    g.label("L_fin")
    if stamps:
        stamp()
        e("s_getreg_b32 s58, hwreg(HW_REG_HW_ID)")
        e("s_getreg_b32 s59, hwreg(HW_REG_XCC_ID)")
        e("s_waitcnt lgkmcnt(0)")
        e(f"s_mul_i32 s{S_TMP}, s2, {nw}")
        e(f"s_add_u32 s{S_TMP}, s{S_TMP}, s{S_W}")
        e(f"s_lshl_b32 s{S_TMP}, s{S_TMP}, 7")
        e(f"v_mov_b32 v{V_OFF}, s{S_TMP}")
        for i in range(20):
            e(f"v_mov_b32 v{BUF + i}, s{S_ST + i}")
        for i in range(5):
            e(f"global_store_dwordx4 v{V_OFF}, {vr(BUF + 4 * i, 4)}, s[{S_WS}:{S_WS + 1}] offset:{16 * i}")
    g.label("L_end")
    e("s_endpgm")

    nv_alloc = max(nv, 8)
    out = HEADER
    out += f"; @launch grid=(256,1,1) block=({nw * 64},1,1) lds={lds}\n"
    out += '.amdgcn_target "amdgcn-amd-amdhsa--gfx950"\n.text\n'
    out += f".globl {NAME}\n.p2align 8\n.type {NAME},@function\n"
    out += "\n".join(g.lines) + "\n"
    out += f""".section .rodata,"a"
.p2align 6
.amdhsa_kernel {NAME}
  .amdhsa_next_free_vgpr {nv_alloc}
  .amdhsa_next_free_sgpr 64
  .amdhsa_accum_offset {(nv_alloc + 3) // 4 * 4}
  .amdhsa_group_segment_fixed_size 0
  .amdhsa_kernarg_size 64
  .amdhsa_user_sgpr_count 2
  .amdhsa_user_sgpr_kernarg_segment_ptr 1
  .amdhsa_system_sgpr_workgroup_id_x 1
  .amdhsa_float_denorm_mode_32 3
.end_amdhsa_kernel
"""
    return out


if __name__ == "__main__":
    ap = argparse.ArgumentParser()
    ap.add_argument("-o", required=True)
    ap.add_argument("--nw", type=int, default=8)
    ap.add_argument("--nb", type=int, default=4)
    ap.add_argument("--order", default="kv")
    ap.add_argument("--interleave", type=int, default=0)
    ap.add_argument("--flags", default="nt")
    ap.add_argument("--stamps", type=int, default=0)
    a = ap.parse_args()
    open(a.o, "w").write(build(a.nw, a.nb, a.order, bool(a.interleave), a.flags, 0, bool(a.stamps)))
```

```python
import sys

NAME = "standalone__low_rank_proj_linformer__sampling_kernel"

HEADER = """; Kernarg layout for this problem (64 bytes, ptrs only, base s[0:1]):
;
;    row (s>>2) + 2*(t&3) + 8*(w&1) + 16*g + 64*(w>>1) + 128*(s&3) + 512*(t>>2).
"""


class Gen:
    def __init__(self):
        self.lines = []
        self.vm = []

    def e(self, s):
        self.lines.append("    " + s)

    def c(self, s):
        self.lines.append("    ; " + s)

    def label(self, s):
        self.lines.append(s + ":")

    def vload(self, s, tag):
        self.e(s)
        self.vm.append(tag)
        assert len(self.vm) <= 63, "vmcnt overflow"

    def vwait(self, *tags):
        last = -1
        for i, t in enumerate(self.vm):
            if t in tags:
                last = i
        if last < 0:
            return
        n = len(self.vm) - 1 - last
        self.e(f"s_waitcnt vmcnt({n})")
        self.vm = self.vm[last + 1:]


def vr(a, n=1):
    return f"v{a}" if n == 1 else f"v[{a}:{a + n - 1}]"


def ar(a, n=1):
    return f"a{a}" if n == 1 else f"a[{a}:{a + n - 1}]"


def build(win="5", win2=12, tailn=12, win0=0, flags="nt", stamps=0, trace=0, stampset=1, ring=16,
          qat=16, efpro=0, sites="", ie=0, io=0, iw=0, i4=0, ihi=0, den=64, wmap="34", gmap="56", abl="", pe=0, po=0, efmode="reg", efper=2, efflags="", wk="", wkend=96, efst=2, pf="", ef0=0, pfstride=64, fixp=0, fixo=1, pairtail=0):
    T, NW = 16, 4
    NL = 2 * T * 8
    wins = [int(ch, 36) for ch in str(win)]
    sites = [int(ch) for ch in str(sites)]
    wbits = [int(ch) for ch in str(wmap)]
    gbits = [int(ch) for ch in str(gmap)]
    assert sorted(wbits + gbits) == [3, 4, 5, 6]
    g = Gen()
    e, c = g.e, g.c

    V_OFF, V_LANE, V_G, V_J, V_A, V_EFA, V_TR = 1, 2, 3, 4, 5, 6, 8
    WA, RA, OA = 10, 11, 12
    P = 16
    QR = 20
    ACC = 36
    SCR = ACC + 32
    TT = SCR + 32
    RING = TT + 64
    nv = (RING + 4 * ring + 3) // 4 * 4
    assert nv <= 256
    EF = 0
    dma = efmode != "reg"
    na = 8 if dma else 4 * T
    V_ER, V_EB = 13, 9

    S_Q, S_K, S_V, S_E, S_F, S_O = 4, 6, 8, 10, 12, 14
    SRD_K, SRD_V, SRD_Q, SRD_O = 16, 20, 24, 28
    S_W, S_WB, S_SELL, S_SELH, S_TMP, S_HB = 32, 33, 35, 36, 37, 38
    S_ST, S_WS = 40, 60
    S_ACC, S_INC = 56, 57
    S_SO = 64
    SRD_E, SRD_F, S_EB, S_ES = 68, 72, 76, 77

    CSTR, WSTR = 320, 2560
    LDS_S = 0
    LDS_V = NW * 1024
    lds = LDS_V + 2 * NW * WSTR
    LDS_E, BS = lds, 1040
    if dma:
        lds += NW * 16 * BS

    nstamp = [0]

    def stamp(kind=1):
        if stamps and (kind == 0 or kind == stampset):
            i = nstamp[0]
            nstamp[0] += 1
            e(f"s_memrealtime s[{S_ST + 2 * i}:{S_ST + 2 * i + 1}]")

    def tr():
        if trace:
            e("s_memrealtime s[52:53]")
            e("s_mov_b32 m0, s54")
            e("s_add_u32 s54, s54, 1")
            e("s_waitcnt lgkmcnt(0)")
            e(f"v_writelane_b32 v{V_TR}, s52, m0")

    g.label(NAME)
    e("s_cmp_ge_u32 s2, 256")
    e("s_cbranch_scc1 L_end")
    stamp(0)
    e("s_load_dwordx8 s[4:11], s[0:1], 0")
    e("s_load_dwordx4 s[12:15], s[0:1], 32")
    if stamps:
        e(f"s_load_dwordx2 s[{S_WS}:{S_WS + 1}], s[0:1], 56")
        e("s_mov_b32 s54, 0")
        e(f"v_mov_b32 v{V_TR}, 0")
    e(f"v_lshrrev_b32 v{V_G}, 6, v0")
    e(f"v_and_b32 v{V_LANE}, 63, v0")
    e(f"v_readfirstlane_b32 s{S_W}, v{V_G}")
    e(f"v_lshrrev_b32 v{V_G}, 4, v{V_LANE}")
    e(f"v_and_b32 v{V_J}, 15, v{V_LANE}")
    if gbits[1] == gbits[0] + 1:
        e(f"v_lshlrev_b32 v{V_EFA}, {8 + gbits[0]}, v{V_G}")
    else:
        e(f"v_and_b32 v{V_EFA}, 1, v{V_G}")
        e(f"v_lshlrev_b32 v{V_EFA}, {8 + gbits[0]}, v{V_EFA}")
        e(f"v_lshrrev_b32 v{V_OFF}, 1, v{V_G}")
        e(f"v_lshl_add_u32 v{V_EFA}, v{V_OFF}, {8 + gbits[1]}, v{V_EFA}")
    e(f"v_lshl_add_u32 v{V_OFF}, v{V_J}, 4, v{V_EFA}")
    e(f"s_lshl_b32 s{S_HB}, s2, 19")
    e(f"s_mov_b32 s{SRD_K + 2}, 0x80000")
    e(f"s_mov_b32 s{SRD_K + 3}, 0x20000")
    e(f"s_mov_b32 s{SRD_V + 2}, 0x80000")
    e(f"s_mov_b32 s{SRD_V + 3}, 0x20000")
    if wbits[1] == wbits[0] + 1:
        e(f"s_lshl_b32 s{S_WB}, s{S_W}, {8 + wbits[0]}")
    else:
        e(f"s_and_b32 s{S_WB}, s{S_W}, 1")
        e(f"s_lshl_b32 s{S_WB}, s{S_WB}, {8 + wbits[0]}")
        e(f"s_lshr_b32 s{S_TMP}, s{S_W}, 1")
        e(f"s_lshl_b32 s{S_TMP}, s{S_TMP}, {8 + wbits[1]}")
        e(f"s_add_u32 s{S_WB}, s{S_WB}, s{S_TMP}")
    for k in range(4):
        e(f"s_add_u32 s{S_SO + k}, s{S_WB}, {k * 0x8000}")
    e("s_waitcnt lgkmcnt(0)")
    e(f"s_add_u32 s{SRD_K}, s{S_K}, s{S_HB}")
    e(f"s_addc_u32 s{SRD_K + 1}, s{S_K + 1}, 0")
    stamp()

    cur = [0] * 4

    def issue(n):
        ten, m = divmod(n, T * 8)
        t, s = divmod(m, 8)
        if pairtail and n >= NL - 8:
            s = (s >> 1) + 4 * (s & 1)
        k, grp = s & 3, t >> 2
        if cur[k] != grp:
            e(f"s_add_u32 s{S_SO + k}, s{S_WB}, {k * 0x8000 + grp * 0x20000}")
            cur[k] = grp
        srd = SRD_K if ten == 0 else SRD_V
        d = RING + 4 * (n % ring)
        off = (s >> 2) * 256 + (t & 3) * 512
        g.vload(f"buffer_load_dwordx4 {vr(d, 4)}, v{V_OFF}, s[{srd}:{srd + 3}], s{S_SO + k} offen offset:{off} {flags}".rstrip(), ("d", n))

    def issue_ef(u):
        if "e" in abl:
            return
        if efmode == "dmaG":
            grp, q = divmod(u, 4)
            srd = SRD_E if q < 2 else SRD_F
            e(f"s_add_u32 m0, s{S_EB}, {u * BS - grp * 1024}")
            e("s_nop 0")
            g.vload(f"buffer_load_dwordx4 v{V_EFA + (q & 1)}, s[{srd}:{srd + 3}], 0 offen offset:{grp * 1024} {efflags} lds", ("ef", u))
        elif efmode == "dmaA":
            srd = SRD_E if u < 8 else SRD_F
            e(f"s_add_u32 m0, s{S_EB}, {u * BS}")
            e(f"s_mov_b32 s{S_ES}, {(u & 7) * 4096}")
            g.vload(f"buffer_load_dwordx4 v{V_EFA}, s[{srd}:{srd + 3}], s{S_ES} offen {efflags} lds", ("ef", u))
        else:
            g.vload(f"global_load_dwordx4 {vr(SCR + 4 * (u % 4), 4)}, {vr(V_EFA, 2)}, off offset:{u * 256}", ("ef", u))

    ef_done = set()

    def move_ef(u):
        assert ("ef", u) not in g.vm, u
        if dma:
            ef_done.add(u)
            return
        grp, m = divmod(u, 4)
        for t01 in range(4):
            e(f"v_accvgpr_write_b32 a{EF + 4 * (4 * grp + t01) + m}, v{SCR + 4 * m + t01}")
        ef_done.add(u)

    def window(done):
        if NL - done <= tailn:
            return win2
        if done == 0 and win0:
            return win0
        if wk and done < wkend:
            return int(wk[done % len(wk)])
        return wins[done % len(wins)]

    def oldest_live(n):
        return (n & ~7) + max(0, (n & 7) - 4)

    issued = 0
    while issued < window(0):
        issue(issued)
        issued += 1
    e(f"s_add_u32 s{SRD_V}, s{S_V}, s{S_HB}")
    e(f"s_addc_u32 s{SRD_V + 1}, s{S_V + 1}, 0")
    S_PA, S_PD = 78, 39
    if "v" in pf:
        c("first touch of this head's V page")
        e(f"s_load_dword s{S_PD}, s[{SRD_V}:{SRD_V + 1}], 0")
    for ch, srd in (("V", SRD_V), ("K", SRD_K)):
        if ch in pf:
            c(f"first touch inside this head's {ch}: wave w touches offset w*128 KiB")
            e(f"s_lshl_b32 s{S_TMP}, s{S_W}, 17")
            e(f"s_add_u32 s{S_PA}, s{srd}, s{S_TMP}")
            e(f"s_addc_u32 s{S_PA + 1}, s{srd + 1}, 0")
            e(f"s_load_dword s{S_PD}, s[{S_PA}:{S_PA + 1}], 0")
    if "o" in pf:
        e(f"s_load_dword s{S_PD}, s[{S_O}:{S_O + 1}], 0")
    if "1" in pf:
        c("first touch of the Q page")
        e(f"s_load_dword s{S_PD}, s[{S_Q}:{S_Q + 1}], 0")
    if "t" in pf:
        c("first touch of the E and F pages")
        e(f"s_load_dword s{S_PD}, s[{S_E}:{S_E + 1}], 0")
        e(f"s_load_dword s{S_PD}, s[{S_F}:{S_F + 1}], 0")
    if "e" in pf:
        c("L2 prefetch of E and F: each wave touches its own 256-byte slice of both")
        e(f"s_lshr_b32 s{S_TMP}, s2, 3")
        e(f"s_lshl_b32 s{S_TMP}, s{S_TMP}, 2")
        e(f"s_add_u32 s{S_TMP}, s{S_TMP}, s{S_W}")
        e(f"s_and_b32 s{S_PA}, s{S_TMP}, 7")
        e(f"s_lshl_b32 s{S_PA}, s{S_PA}, 12")
        e(f"s_lshr_b32 s{S_TMP}, s{S_TMP}, 3")
        e(f"s_lshl_b32 s{S_TMP}, s{S_TMP}, 8")
        e(f"s_add_u32 s{S_TMP}, s{S_TMP}, s{S_PA}")
        for b in (S_E, S_F):
            e(f"s_add_u32 s{S_PA}, s{b}, s{S_TMP}")
            e(f"s_addc_u32 s{S_PA + 1}, s{b + 1}, 0")
            for o in range(0, 256, pfstride):
                e(f"s_load_dword s{S_PD}, s[{S_PA}:{S_PA + 1}], {o}")
    if "q" in pf:
        c("L2 prefetch of this head's Q")
        e(f"s_lshl_b32 s{S_TMP}, s2, 2")
        e(f"s_add_u32 s{S_TMP}, s{S_TMP}, s{S_W}")
        e(f"s_lshl_b32 s{S_TMP}, s{S_TMP}, 9")
        e(f"s_add_u32 s{S_PA}, s{S_Q}, s{S_TMP}")
        e(f"s_addc_u32 s{S_PA + 1}, s{S_Q + 1}, 0")
        for o in range(0, 512, pfstride):
            e(f"s_load_dword s{S_PD}, s[{S_PA}:{S_PA + 1}], {o}")
    def lane_bits(dst, src, lo, shifts, first):
        for k, sh in enumerate(shifts):
            e(f"v_bfe_u32 v{SCR}, v{src}, {lo + k}, 1")
            if first and k == 0:
                e(f"v_lshlrev_b32 v{dst}, {sh}, v{SCR}")
            else:
                e(f"v_lshl_add_u32 v{dst}, v{SCR}, {sh}, v{dst}")

    if dma:
        c("E/F go to a per-wave LDS image by LDS-DMA; lane&3 picks the lane group's 16 bytes")
        for srd, b in ((SRD_E, S_E), (SRD_F, S_F)):
            e(f"s_mov_b32 s{srd}, s{b}")
            e(f"s_mov_b32 s{srd + 1}, s{b + 1}")
            e(f"s_mov_b32 s{srd + 2}, 0x8000")
            e(f"s_mov_b32 s{srd + 3}, 0x20000")
        e(f"s_mul_i32 s{S_EB}, s{S_W}, {16 * BS}")
        e(f"s_add_u32 s{S_EB}, s{S_EB}, {LDS_E}")
        lane_bits(V_EFA, V_LANE, 0, [gb + 1 for gb in gbits], True)
        e(f"s_lshr_b32 s{S_TMP}, s{S_WB}, 7")
        e(f"v_add_u32 v{V_EFA}, s{S_TMP}, v{V_EFA}")
        if efmode == "dmaG":
            e(f"v_bfe_u32 v{SCR}, v{V_LANE}, 2, 2")
            e(f"v_lshl_add_u32 v{V_EFA}, v{SCR}, 8, v{V_EFA}")
            e(f"v_lshl_add_u32 v{V_EFA}, v{V_G}, 12, v{V_EFA}")
            e(f"v_add_u32 v{V_EFA + 1}, 0x4000, v{V_EFA}")
            e(f"v_lshrrev_b32 v{SCR}, 2, v{V_J}")
            e(f"v_mul_u32_u24 v{V_EB}, {BS}, v{SCR}")
            e(f"v_and_b32 v{SCR}, 3, v{V_J}")
            e(f"v_lshl_add_u32 v{V_EB}, v{SCR}, 8, v{V_EB}")
        else:
            e(f"v_lshrrev_b32 v{SCR}, 2, v{V_LANE}")
            e(f"v_lshl_add_u32 v{V_EFA}, v{SCR}, 8, v{V_EFA}")
            e(f"v_mul_u32_u24 v{V_EB}, {BS}, v{V_J}")
        e(f"v_lshl_add_u32 v{V_EB}, v{V_G}, 4, v{V_EB}")
        e(f"v_add_u32 v{V_EB}, s{S_EB}, v{V_EB}")
        e(f"s_mov_b32 s{S_SELL}, 0x05040100")
        e(f"s_mov_b32 s{S_SELH}, 0x07060302")
    else:
        c("E/F address: lane (r=l&15, g): (r<8 ? e : f) + (r&7)*4096 + 2*(row offset of w, g)")
        e(f"v_lshrrev_b32 v{SCR + 2}, 7, v{V_EFA}")
        e(f"v_cmp_gt_u32 vcc, 8, v{V_J}")
        e(f"v_mov_b32 v{V_EFA}, s{S_F}")
        e(f"v_mov_b32 v{V_EFA + 1}, s{S_F + 1}")
        e(f"v_mov_b32 v{SCR}, s{S_E}")
        e(f"v_mov_b32 v{SCR + 1}, s{S_E + 1}")
        e(f"v_cndmask_b32 v{V_EFA}, v{V_EFA}, v{SCR}, vcc")
        e(f"v_cndmask_b32 v{V_EFA + 1}, v{V_EFA + 1}, v{SCR + 1}, vcc")
        e(f"v_and_b32 v{SCR}, 7, v{V_J}")
        e(f"v_lshl_add_u32 v{SCR}, v{SCR}, 12, v{SCR + 2}")
        e(f"s_lshr_b32 s{S_TMP}, s{S_WB}, 7")
        e(f"v_add_u32 v{SCR}, s{S_TMP}, v{SCR}")
        e(f"v_add_co_u32 v{V_EFA}, vcc, v{V_EFA}, v{SCR}")
        e(f"s_mov_b32 s{S_SELL}, 0x05040100")
        e(f"s_mov_b32 s{S_SELH}, 0x07060302")
        e(f"v_addc_co_u32 v{V_EFA + 1}, vcc, 0, v{V_EFA + 1}, vcc")

    ef_issue, ef_move = {}, {}
    lagm = max(wins + [int(ch) for ch in wk]) + 2
    for u in range(16):
        if efmode == "dmaA":
            st = u // efper - (1 if efpro else 0)
        elif u < 4:
            st = -1 if efpro else u + ef0
        elif u < 8:
            st = 8 + ef0 + 4 * (u - 4) + efst % 4
        else:
            st = 8 * (u - 4) + efst
        ef_issue.setdefault(st, []).append(u)
        ef_move.setdefault(max(st, 0) + lagm + (u if (u < 4 and efpro) else 0) // 2, []).append(u)
    for u in ef_issue.get(-1, []):
        issue_ef(u)

    e(f"s_lshl_b32 s{S_TMP}, s2, 11")
    e(f"s_add_u32 s{SRD_Q}, s{S_Q}, s{S_TMP}")
    e(f"s_addc_u32 s{SRD_Q + 1}, s{S_Q + 1}, 0")
    e(f"s_mov_b32 s{SRD_Q + 2}, 2048")
    e(f"s_mov_b32 s{SRD_Q + 3}, 0x20000")
    e(f"s_add_u32 s{SRD_O}, s{S_O}, s{S_TMP}")
    e(f"s_addc_u32 s{SRD_O + 1}, s{S_O + 1}, 0")
    e(f"s_mov_b32 s{SRD_O + 2}, 2048")
    e(f"s_mov_b32 s{SRD_O + 3}, 0x20000")
    e(f"v_lshlrev_b32 v{V_A}, 8, v{V_J}")
    e(f"v_lshl_add_u32 v{V_A}, v{V_G}, 6, v{V_A}")
    if sites:
        c("early-issue duty per site from the XCD id and the wave index; affects load timing only")
        e(f"s_getreg_b32 s{S_TMP}, hwreg(HW_REG_XCC_ID, 0, 4)")
        e(f"s_bitcmp1_b32 s{S_TMP}, 0")
        if pe or po:
            sp = 8 // len(sites)
            inc = lambda p: 0 if not p else min(0xFFFFFFFF, -(-(sp << 32) // p))
            e(f"s_mov_b32 s{S_ACC}, {hex(inc(po))}")
            e(f"s_cselect_b32 s{S_INC}, s{S_ACC}, {hex(inc(pe))}")
        else:
            e(f"s_cselect_b32 s{S_INC}, {io}, {ie}")
            if i4:
                e(f"s_cmp_eq_u32 s{S_TMP}, 4")
                e(f"s_cselect_b32 s{S_ACC}, {i4}, 0")
                e(f"s_add_u32 s{S_INC}, s{S_INC}, s{S_ACC}")
            if ihi:
                e(f"s_cmp_ge_u32 s{S_TMP}, 4")
                e(f"s_cselect_b32 s{S_ACC}, {ihi}, 0")
                e(f"s_add_u32 s{S_INC}, s{S_INC}, s{S_ACC}")
            if iw:
                e(f"s_mul_i32 s{S_ACC}, s{S_W}, {iw}")
                e(f"s_add_u32 s{S_INC}, s{S_INC}, s{S_ACC}")
            e(f"s_min_u32 s{S_INC}, s{S_INC}, {den}")
            e(f"s_mul_i32 s{S_INC}, s{S_INC}, {hex(0xFFFFFFFF // den)}")
        e(f"s_mov_b32 s{S_ACC}, 0x80000000")
    if fixp:
        c("VCC = even XCD id: those dies issue one load a step early every few steps (load timing only)")
        e(f"s_getreg_b32 s{S_TMP}, hwreg(HW_REG_XCC_ID, 0, 1)")
        e(f"s_cmp_eq_u32 s{S_TMP}, 0")
        e("s_cselect_b64 vcc, -1, 0")
    c("LDS / output addresses of the tail")
    e(f"s_mul_i32 s{S_TMP}, s{S_W}, {WSTR}")
    e(f"v_and_b32 v{WA}, 1, v{V_G}")
    e(f"v_lshlrev_b32 v{WA}, 3, v{WA}")
    e(f"v_lshl_add_u32 v{WA}, v{V_J}, 4, v{WA}")
    e(f"v_add_u32 v{WA}, s{S_TMP}, v{WA}")
    c("lane groups 0,1 hold unused rows: their LDS writes go to a scratch copy of the buffer")
    e(f"v_lshrrev_b32 v{RA}, 1, v{V_G}")
    e(f"v_xor_b32 v{RA}, 1, v{RA}")
    e(f"v_mul_u32_u24 v{RA}, {NW * WSTR}, v{RA}")
    e(f"v_add_u32 v{WA}, v{WA}, v{RA}")
    e(f"v_and_b32 v{RA}, 3, v{V_J}")
    e(f"v_mul_u32_u24 v{RA}, {CSTR}, v{RA}")
    e(f"v_lshrrev_b32 v{OA}, 2, v{V_J}")
    e(f"v_lshl_add_u32 v{RA}, v{OA}, 4, v{RA}")
    e(f"v_mul_u32_u24 v{OA}, {WSTR}, v{V_G}")
    e(f"v_add_u32 v{RA}, v{RA}, v{OA}")
    e(f"s_lshl_b32 s{S_TMP}, s{S_W}, 6")
    e(f"v_add_u32 v{RA}, s{S_TMP}, v{RA}")
    e(f"v_lshlrev_b32 v{OA}, 8, v{V_J}")
    e(f"v_lshl_add_u32 v{OA}, v{V_G}, 4, v{OA}")
    e(f"v_add_u32 v{OA}, s{S_TMP}, v{OA}")
    stamp()

    frag_read, frag_wait, er_grp = set(), [None], [None]

    def ef_landed(tile):
        grp = (tile % T) >> 2
        return all(u in ef_done for u in (range(16) if efmode == "dmaA" else range(4 * grp, 4 * grp + 4)))

    def ef_ready(tile):
        return tile in frag_read if dma else ef_landed(tile)

    def read_frag(tile):
        grp, t01 = divmod(tile % T, 4)
        assert frag_wait[0] is None
        if efmode == "dmaG":
            if er_grp[0] != grp:
                e(f"v_add_u32 v{V_ER}, {4 * BS * grp}, v{V_EB}")
                er_grp[0] = grp
            va, o = V_ER, t01
        else:
            va, o = V_EB, 64 * grp + t01
        for h in range(2):
            e(f"ds_read2_b32 {ar(EF + 4 * (tile % 2) + 2 * h, 2)}, v{va} offset0:{o + 32 * h} offset1:{o + 32 * h + 16}")
        frag_read.add(tile)
        frag_wait[0] = tile

    def mfma(tile, cc):
        if "m" in abl:
            return
        ten, t = divmod(tile, T)
        assert ef_ready(tile), tile
        if dma and frag_wait[0] == tile:
            e("s_waitcnt lgkmcnt(0)")
            frag_wait[0] = None
        d = TT + 32 * (tile % 2) + 4 * cc
        a = ACC + 4 * cc
        f = ar(EF + 4 * (tile % 2 if dma else t), 4)
        src = "0" if t == 0 else vr(a, 4)
        if ten == 0:
            e(f"v_mfma_f32_16x16x32_bf16 {vr(a, 4)}, {vr(d, 4)}, {f}, {src}")
        else:
            e(f"v_mfma_f32_16x16x32_bf16 {vr(a, 4)}, {f}, {vr(d, 4)}, {src}")

    def perm(n, cc):
        if "p" in abl:
            return
        tile, m = n // 8, n % 8 - 4
        lo = RING + 4 * ((n - 4) % ring)
        if pairtail and n >= NL - 8:
            m = (n % 8) >> 1
            lo = RING + 4 * ((n - 1) % ring)
        hi = RING + 4 * (n % ring)
        sel = S_SELL if cc % 2 == 0 else S_SELH
        e(f"v_perm_b32 v{TT + 32 * (tile % 2) + 4 * cc + m}, v{hi + (cc >> 1)}, v{lo + (cc >> 1)}, s{sel}")

    def softmax():
        c("score reduction over waves + softmax")
        e("s_waitcnt lgkmcnt(0)")
        e("s_barrier")
        e(f"v_and_b32 v{V_A}, 7, v{V_LANE}")
        e(f"v_lshlrev_b32 v{V_A}, 4, v{V_A}")
        for w in range(4):
            for h in range(2):
                e(f"ds_read_b128 {vr(SCR + 8 * w + 4 * h, 4)}, v{V_A} offset:{LDS_S + w * 1024 + h * 256}")
        S0 = QR
        M = QR + 8
        e("s_waitcnt lgkmcnt(0)")
        for k in range(8):
            e(f"v_add_f32 v{SCR + k}, v{SCR + k}, v{SCR + 8 + k}")
            e(f"v_add_f32 v{SCR + 16 + k}, v{SCR + 16 + k}, v{SCR + 24 + k}")
        for k in range(8):
            e(f"v_add_f32 v{S0 + k}, v{SCR + k}, v{SCR + 16 + k}")
        e(f"v_max3_f32 v{M}, v{S0}, v{S0 + 1}, v{S0 + 2}")
        e(f"v_max3_f32 v{M}, v{M}, v{S0 + 3}, v{S0 + 4}")
        e(f"v_max3_f32 v{M}, v{M}, v{S0 + 5}, v{S0 + 6}")
        e(f"v_max_f32 v{M}, v{M}, v{S0 + 7}")
        c("128^-0.5 * log2(e)")
        e(f"s_mov_b32 s{S_TMP}, 0x3e0293ee")
        for k in range(8):
            e(f"v_sub_f32 v{S0 + k}, v{S0 + k}, v{M}")
        for k in range(8):
            e(f"v_mul_f32 v{S0 + k}, s{S_TMP}, v{S0 + k}")
        for k in range(8):
            e(f"v_exp_f32 v{S0 + k}, v{S0 + k}")
        e("s_nop 0")
        e(f"v_add_f32 v{M}, v{S0}, v{S0 + 1}")
        e(f"v_add_f32 v{M + 1}, v{S0 + 2}, v{S0 + 3}")
        e(f"v_add_f32 v{M + 2}, v{S0 + 4}, v{S0 + 5}")
        e(f"v_add_f32 v{M + 3}, v{S0 + 6}, v{S0 + 7}")
        e(f"v_add_f32 v{M}, v{M}, v{M + 1}")
        e(f"v_add_f32 v{M + 2}, v{M + 2}, v{M + 3}")
        e(f"v_add_f32 v{M}, v{M}, v{M + 2}")
        e(f"v_rcp_f32 v{M}, v{M}")
        e("s_nop 0")
        for k in range(8):
            e(f"v_mul_f32 v{S0 + k}, v{S0 + k}, v{M}")
        for k in range(4):
            e(f"v_cvt_pk_bf16_f32 v{P + k}, v{S0 + 2 * k}, v{S0 + 2 * k + 1}")

    pending = []
    did_softmax = False
    for n in range(NL):
        tile, i = divmod(n, 8)
        ten, t = divmod(tile, T)
        if i == 0:
            c(f"---- tile {tile}: {'KV'[ten]}{t}")
        site = i in sites or (fixp and n % fixp == fixo)
        if site and n > 0 and NL - (n + 1) > tailn and issued <= n + window(n + 1):
            if fixp:
                e(f"s_cbranch_vccnz L_e{n}")
            else:
                e(f"s_add_u32 s{S_ACC}, s{S_ACC}, s{S_INC}")
                e(f"s_cbranch_scc1 L_e{n}")
            keep = list(g.vm)
            g.vwait(("d", n))
            g.vm = keep
            g.label(f"L_e{n}")
            issue(issued)
            issued += 1
        g.vwait(("d", n))
        if n == 0:
            stamp()
        if n == NL - 1:
            stamp(2)
        tgt = min(NL, n + 1 + window(n + 1), oldest_live(n) + ring)
        while issued < tgt:
            issue(issued)
            issued += 1
        for u in ef_issue.get(n, []):
            issue_ef(u)
        if n == qat and "q" not in abl:
            for m in range(4):
                g.vload(f"buffer_load_dwordx4 {vr(QR + 4 * m, 4)}, v{V_A}, s[{SRD_Q}:{SRD_Q + 3}], 0 offen offset:{m * 16}", ("q",))
        if issued == NL and not did_softmax:
            did_softmax = True
            stamp(0)
            softmax()
        if n == NL - 1:
            break
        for _ in range(2):
            if pending and ef_ready(pending[0][0]):
                mfma(*pending.pop(0))
        for u in ef_move.get(n, []):
            move_ef(u)
        if dma:
            nxt = len(frag_read)
            busy = any(p[0] == nxt - 2 for p in pending) or frag_wait[0] is not None
            if not busy and nxt < 2 * T and ef_landed(nxt) and n >= 8 * nxt + 5:
                read_frag(nxt)
        if tile == T:
            if i in (4, 5):
                if i == 4:
                    c("partial scores S_w^T[r][q] = kp_w . Q^T")
                    assert not pending
                    g.vwait(("q",))
                    e("s_nop 3")
                for m in (2 * (i - 4), 2 * (i - 4) + 1):
                    for k in range(4):
                        e(f"v_cvt_pk_bf16_f32 v{SCR + 4 + 4 * m + k}, v{ACC + 4 * (2 * k) + m}, v{ACC + 4 * (2 * k + 1) + m}")
            elif i == 6:
                e(f"s_lshl_b32 s{S_TMP}, s{S_W}, 10")
                e(f"v_lshlrev_b32 v{V_A}, 4, v{V_LANE}")
                for m in range(4):
                    src = "0" if m == 0 else vr(SCR, 4)
                    e(f"v_mfma_f32_16x16x32_bf16 {vr(SCR, 4)}, {vr(SCR + 4 + 4 * m, 4)}, {vr(QR + 4 * m, 4)}, {src}")
                e(f"v_add_u32 v{V_A}, s{S_TMP}, v{V_A}")
        if (i % 2 == 1) if (pairtail and n >= NL - 8) else (i >= 4):
            if i == 4 or (pairtail and n == NL - 7):
                assert all(p[0] != tile - 2 for p in pending)
            for cc in range(8):
                perm(n, cc)
        if i == 7:
            if tile == T:
                e(f"ds_write_b128 v{V_A}, {vr(SCR, 4)} offset:{LDS_S}")
            pending += [(tile, cc) for cc in range(8)]
            tr()

    c("---- tail: last k-pair, bf16 partial vp -> LDS, reduce over waves with MFMA against P")
    assert not pending
    tile = 2 * T - 1

    def cvt(cc, h):
        e(f"v_cvt_pk_bf16_f32 v{SCR + 2 * cc + h}, v{ACC + 4 * cc + 2 * h}, v{ACC + 4 * cc + 2 * h + 1}")

    def wr(cc):
        e(f"ds_write_b64 v{WA}, {vr(SCR + 2 * cc, 2)} offset:{LDS_V + cc * CSTR}")

    seq = [("p", 0), ("p", 1), ("p", 2), ("m", 0), ("p", 3), ("p", 4), ("m", 1), ("p", 5), ("p", 6), ("m", 2), ("p", 7),
           ("n", 0), ("m", 3)]
    for cc in range(4):
        seq += [("c", cc), ("d", cc), ("w", cc), ("m", cc + 4)]
    seq += [("c", 4), ("d", 4), ("w", 4), ("c", 5), ("d", 5), ("w", 5), ("n", 0), ("c", 6), ("d", 6), ("w", 6),
            ("c", 7), ("d", 7), ("w", 7)]
    pos = {}
    for k, (op, cc) in enumerate(seq):
        pos[(op, cc)] = k
        if op == "m":
            assert k - pos[("p", cc)] - 1 >= 2
        if op == "c":
            assert k - pos[("m", cc)] - 1 >= 8
        {"p": lambda x: perm(NL - 1, x), "m": lambda x: mfma(tile, x), "c": lambda x: cvt(x, 0), "d": lambda x: cvt(x, 1),
         "w": wr, "n": lambda x: e(f"s_nop {x}")}[op](cc)
    tr()
    e("s_waitcnt lgkmcnt(0)")
    stamp(2)
    e("s_barrier")
    stamp(2)
    if stamps and stampset == 2:
        e("s_waitcnt lgkmcnt(0)")
    e(f"ds_read_b128 {vr(TT, 4)}, v{RA} offset:{LDS_V}")
    e(f"ds_read_b128 {vr(TT + 4, 4)}, v{RA} offset:{LDS_V + 4 * CSTR}")
    e("s_waitcnt lgkmcnt(1)")
    e(f"v_mfma_f32_16x16x32_bf16 {vr(TT + 8, 4)}, {vr(TT, 4)}, {vr(P, 4)}, 0")
    e("s_waitcnt lgkmcnt(0)")
    e(f"v_mfma_f32_16x16x32_bf16 {vr(TT + 12, 4)}, {vr(TT + 4, 4)}, {vr(P, 4)}, 0")
    e("s_nop 5")
    e(f"v_cvt_pk_bf16_f32 v{TT + 16}, v{TT + 8}, v{TT + 9}")
    e(f"v_cvt_pk_bf16_f32 v{TT + 17}, v{TT + 10}, v{TT + 11}")
    e(f"v_cvt_pk_bf16_f32 v{TT + 18}, v{TT + 12}, v{TT + 13}")
    e(f"v_cvt_pk_bf16_f32 v{TT + 19}, v{TT + 14}, v{TT + 15}")
    e(f"buffer_store_dwordx4 {vr(TT + 16, 4)}, v{OA}, s[{SRD_O}:{SRD_O + 3}], 0 offen")
    if stamps:
        if stamps > 1:
            e("s_waitcnt vmcnt(0)")
        stamp(0)
        assert nstamp[0] == 6
        e("s_getreg_b32 s58, hwreg(HW_REG_HW_ID)")
        e("s_getreg_b32 s59, hwreg(HW_REG_XCC_ID)")
        e("s_waitcnt lgkmcnt(0)")
        e(f"s_mul_i32 s{S_TMP}, s2, {NW}")
        e(f"s_add_u32 s{S_TMP}, s{S_TMP}, s{S_W}")
        e(f"s_lshl_b32 s{S_TMP}, s{S_TMP}, 7")
        e(f"v_mov_b32 v{V_OFF}, s{S_TMP}")
        for i in range(20):
            e(f"v_mov_b32 v{RING + i}, s{S_ST + i}")
        if trace:
            e(f"s_lshl_b32 s{S_TMP}, s{S_TMP}, 1")
            e(f"s_add_u32 s{S_TMP}, s{S_TMP}, 0x1000000")
            e(f"v_lshl_add_u32 v{V_LANE}, v{V_LANE}, 2, s{S_TMP}")
            e(f"global_store_dword v{V_LANE}, v{V_TR}, s[{S_WS}:{S_WS + 1}]")
        e("s_mov_b64 exec, 1")
        for i in range(5):
            e(f"global_store_dwordx4 v{V_OFF}, {vr(RING + 4 * i, 4)}, s[{S_WS}:{S_WS + 1}] offset:{16 * i}")
    g.label("L_end")
    e("s_endpgm")

    out = HEADER
    out += f"; @launch grid=(256,1,1) block=({NW * 64},1,1) lds={lds}\n"
    out += '.amdgcn_target "amdgcn-amd-amdhsa--gfx950"\n.text\n'
    out += f".globl {NAME}\n.p2align 8\n.type {NAME},@function\n"
    out += "\n".join(g.lines) + "\n"
    out += f""".section .rodata,"a"
.p2align 6
.amdhsa_kernel {NAME}
  .amdhsa_next_free_vgpr {nv + na}
  .amdhsa_next_free_sgpr 80
  .amdhsa_accum_offset {nv}
  .amdhsa_group_segment_fixed_size 0
  .amdhsa_kernarg_size 64
  .amdhsa_user_sgpr_count 2
  .amdhsa_user_sgpr_kernarg_segment_ptr 1
  .amdhsa_system_sgpr_workgroup_id_x 1
  .amdhsa_float_denorm_mode_32 3
.end_amdhsa_kernel
"""
    return out


if __name__ == "__main__":
    for spec in sys.argv[1:]:
        name, _, kvs = spec.partition(":")
        kw = {}
        for kvp in filter(None, kvs.split(",")):
            k, v = kvp.split("=")
            strkeys = ("win", "sites", "wmap", "gmap", "wk")
            kw[k] = int(v) if (v.lstrip("-").isdigit() and k not in strkeys) else v.replace("+", " ").replace("none", "")
        path = name if name.endswith(".s") else f"var/{name}.s"
        open(path, "w").write(build(**kw))
```

```python
import sys

NAME = "standalone__low_rank_proj_linformer__sampling_kernel"

HEADER = """; Kernarg layout for this problem (64 bytes, ptrs only, base s[0:1]):
;
;    row (s>>2) + 2*(t&3) + 8*(w&1) + 16*g + 64*(w>>1) + 128*(s&3) + 512*(t>>2).
"""


class Gen:
    def __init__(self):
        self.lines = []
        self.vm = []

    def e(self, s):
        self.lines.append("    " + s)

    def c(self, s):
        self.lines.append("    ; " + s)

    def label(self, s):
        self.lines.append(s + ":")

    def vload(self, s, tag):
        self.e(s)
        self.vm.append(tag)
        assert len(self.vm) <= 63, "vmcnt overflow"

    def vwait(self, *tags):
        last = -1
        for i, t in enumerate(self.vm):
            if t in tags:
                last = i
        if last < 0:
            return
        n = len(self.vm) - 1 - last
        self.e(f"s_waitcnt vmcnt({n})")
        self.vm = self.vm[last + 1:]


def vr(a, n=1):
    return f"v{a}" if n == 1 else f"v[{a}:{a + n - 1}]"


def ar(a, n=1):
    return f"a{a}" if n == 1 else f"a[{a}:{a + n - 1}]"


def build(win="5", win2=12, tailn=12, win0=0, flags="nt", stamps=0, trace=0, stampset=1, ring=16,
          qat=16, efpro=0, sites="", ie=0, io=0, iw=0, i4=0, ihi=0, den=64, wmap="34", gmap="56", abl="", pe=0, po=0, efmode="reg", efper=2, efflags="", wk="", wkend=96, efst=2, pf="", ef0=0, pfstride=64, fixp=0, fixo=1, pairtail=0, efthin=-1, xb="", xbo=20, xbp=16):
    T, NW = 16, 4
    NL = 2 * T * 8
    wins = [int(ch, 36) for ch in str(win)]
    sites = [int(ch) for ch in str(sites)]
    wbits = [int(ch) for ch in str(wmap)]
    gbits = [int(ch) for ch in str(gmap)]
    assert sorted(wbits + gbits) == [3, 4, 5, 6]
    g = Gen()
    e, c = g.e, g.c

    V_OFF, V_LANE, V_G, V_J, V_A, V_EFA, V_TR = 1, 2, 3, 4, 5, 6, 8
    WA, RA, OA = 10, 11, 12
    P = 16
    QR = 20
    ACC = 36
    SCR = ACC + 32
    TT = SCR + 32
    RING = TT + 64
    nv = (RING + 4 * ring + 3) // 4 * 4
    assert nv <= 256
    EF = 0
    dma = efmode != "reg"
    na = 8 if dma else 4 * T
    V_ER, V_EB = 13, 9

    S_Q, S_K, S_V, S_E, S_F, S_O = 4, 6, 8, 10, 12, 14
    SRD_K, SRD_V, SRD_Q, SRD_O = 16, 20, 24, 28
    S_W, S_WB, S_SELL, S_SELH, S_TMP, S_HB = 32, 33, 35, 36, 37, 38
    S_ST, S_WS = 40, 60
    S_ACC, S_INC = 56, 57
    S_SO = 64
    SRD_E, SRD_F, S_EB, S_ES = 68, 72, 76, 77

    CSTR, WSTR = 320, 2560
    LDS_S = 0
    LDS_V = NW * 1024
    lds = LDS_V + 2 * NW * WSTR
    LDS_E, BS = lds, 1040
    if dma:
        lds += NW * 16 * BS

    nstamp = [0]

    def stamp(kind=1):
        if stamps and (kind == 0 or kind == stampset):
            i = nstamp[0]
            nstamp[0] += 1
            e(f"s_memrealtime s[{S_ST + 2 * i}:{S_ST + 2 * i + 1}]")

    def tr():
        if trace:
            e("s_memrealtime s[52:53]")
            e("s_mov_b32 m0, s54")
            e("s_add_u32 s54, s54, 1")
            e("s_waitcnt lgkmcnt(0)")
            e(f"v_writelane_b32 v{V_TR}, s52, m0")

    g.label(NAME)
    e("s_cmp_ge_u32 s2, 256")
    e("s_cbranch_scc1 L_end")
    stamp(0)
    e("s_load_dwordx8 s[4:11], s[0:1], 0")
    e("s_load_dwordx4 s[12:15], s[0:1], 32")
    if stamps:
        e(f"s_load_dwordx2 s[{S_WS}:{S_WS + 1}], s[0:1], 56")
        e("s_mov_b32 s54, 0")
        e(f"v_mov_b32 v{V_TR}, 0")
    e(f"v_lshrrev_b32 v{V_G}, 6, v0")
    e(f"v_and_b32 v{V_LANE}, 63, v0")
    e(f"v_readfirstlane_b32 s{S_W}, v{V_G}")
    e(f"v_lshrrev_b32 v{V_G}, 4, v{V_LANE}")
    e(f"v_and_b32 v{V_J}, 15, v{V_LANE}")
    if gbits[1] == gbits[0] + 1:
        e(f"v_lshlrev_b32 v{V_EFA}, {8 + gbits[0]}, v{V_G}")
    else:
        e(f"v_and_b32 v{V_EFA}, 1, v{V_G}")
        e(f"v_lshlrev_b32 v{V_EFA}, {8 + gbits[0]}, v{V_EFA}")
        e(f"v_lshrrev_b32 v{V_OFF}, 1, v{V_G}")
        e(f"v_lshl_add_u32 v{V_EFA}, v{V_OFF}, {8 + gbits[1]}, v{V_EFA}")
    e(f"v_lshl_add_u32 v{V_OFF}, v{V_J}, 4, v{V_EFA}")
    e(f"s_lshl_b32 s{S_HB}, s2, 19")
    e(f"s_mov_b32 s{SRD_K + 2}, 0x80000")
    e(f"s_mov_b32 s{SRD_K + 3}, 0x20000")
    e(f"s_mov_b32 s{SRD_V + 2}, 0x80000")
    e(f"s_mov_b32 s{SRD_V + 3}, 0x20000")
    if wbits[1] == wbits[0] + 1:
        e(f"s_lshl_b32 s{S_WB}, s{S_W}, {8 + wbits[0]}")
    else:
        e(f"s_and_b32 s{S_WB}, s{S_W}, 1")
        e(f"s_lshl_b32 s{S_WB}, s{S_WB}, {8 + wbits[0]}")
        e(f"s_lshr_b32 s{S_TMP}, s{S_W}, 1")
        e(f"s_lshl_b32 s{S_TMP}, s{S_TMP}, {8 + wbits[1]}")
        e(f"s_add_u32 s{S_WB}, s{S_WB}, s{S_TMP}")
    for k in range(4):
        e(f"s_add_u32 s{S_SO + k}, s{S_WB}, {k * 0x8000}")
    e("s_waitcnt lgkmcnt(0)")
    e(f"s_add_u32 s{SRD_K}, s{S_K}, s{S_HB}")
    e(f"s_addc_u32 s{SRD_K + 1}, s{S_K + 1}, 0")
    stamp()

    cur = [0] * 4

    def issue(n):
        ten, m = divmod(n, T * 8)
        t, s = divmod(m, 8)
        if pairtail and n >= NL - 8:
            s = (s >> 1) + 4 * (s & 1)
        k, grp = s & 3, t >> 2
        if cur[k] != grp:
            e(f"s_add_u32 s{S_SO + k}, s{S_WB}, {k * 0x8000 + grp * 0x20000}")
            cur[k] = grp
        srd = SRD_K if ten == 0 else SRD_V
        d = RING + 4 * (n % ring)
        off = (s >> 2) * 256 + (t & 3) * 512
        g.vload(f"buffer_load_dwordx4 {vr(d, 4)}, v{V_OFF}, s[{srd}:{srd + 3}], s{S_SO + k} offen offset:{off} {flags}".rstrip(), ("d", n))

    def issue_ef(u):
        if "e" in abl:
            return
        if efmode == "dmaG":
            grp, q = divmod(u, 4)
            srd = SRD_E if q < 2 else SRD_F
            e(f"s_add_u32 m0, s{S_EB}, {u * BS - grp * 1024}")
            e("s_nop 0")
            g.vload(f"buffer_load_dwordx4 v{V_EFA + (q & 1)}, s[{srd}:{srd + 3}], 0 offen offset:{grp * 1024} {efflags} lds", ("ef", u))
        elif efmode == "dmaA":
            srd = SRD_E if u < 8 else SRD_F
            e(f"s_add_u32 m0, s{S_EB}, {u * BS}")
            e(f"s_mov_b32 s{S_ES}, {(u & 7) * 4096}")
            g.vload(f"buffer_load_dwordx4 v{V_EFA}, s[{srd}:{srd + 3}], s{S_ES} offen {efflags} lds", ("ef", u))
        else:
            g.vload(f"global_load_dwordx4 {vr(SCR + 4 * (u % 4), 4)}, {vr(V_EFA, 2)}, off offset:{u * 256}", ("ef", u))

    ef_done = set()

    def move_ef(u):
        assert ("ef", u) not in g.vm, u
        if dma:
            ef_done.add(u)
            return
        grp, m = divmod(u, 4)
        for t01 in range(4):
            e(f"v_accvgpr_write_b32 a{EF + 4 * (4 * grp + t01) + m}, v{SCR + 4 * m + t01}")
        ef_done.add(u)

    def window(done):
        if NL - done <= tailn:
            return win2
        if done == 0 and win0:
            return win0
        if wk and done < wkend:
            return int(wk[done % len(wk)])
        return wins[done % len(wins)]

    def oldest_live(n):
        return (n & ~7) + max(0, (n & 7) - 4)

    issued = 0
    while issued < window(0):
        issue(issued)
        issued += 1
    e(f"s_add_u32 s{SRD_V}, s{S_V}, s{S_HB}")
    e(f"s_addc_u32 s{SRD_V + 1}, s{S_V + 1}, 0")
    S_PA, S_PD = 78, 39
    if "v" in pf:
        c("first touch of this head's V page")
        e(f"s_load_dword s{S_PD}, s[{SRD_V}:{SRD_V + 1}], 0")
    for ch, srd in (("V", SRD_V), ("K", SRD_K)):
        if ch in pf:
            c(f"first touch inside this head's {ch}: wave w touches offset w*128 KiB")
            e(f"s_lshl_b32 s{S_TMP}, s{S_W}, 17")
            e(f"s_add_u32 s{S_PA}, s{srd}, s{S_TMP}")
            e(f"s_addc_u32 s{S_PA + 1}, s{srd + 1}, 0")
            e(f"s_load_dword s{S_PD}, s[{S_PA}:{S_PA + 1}], 0")
    if "o" in pf:
        e(f"s_load_dword s{S_PD}, s[{S_O}:{S_O + 1}], 0")
    if "1" in pf:
        c("first touch of the Q page")
        e(f"s_load_dword s{S_PD}, s[{S_Q}:{S_Q + 1}], 0")
    if "t" in pf:
        c("first touch of the E and F pages")
        e(f"s_load_dword s{S_PD}, s[{S_E}:{S_E + 1}], 0")
        e(f"s_load_dword s{S_PD}, s[{S_F}:{S_F + 1}], 0")
    if "e" in pf:
        c("L2 prefetch of E and F: each wave touches its own 256-byte slice of both")
        e(f"s_lshr_b32 s{S_TMP}, s2, 3")
        e(f"s_lshl_b32 s{S_TMP}, s{S_TMP}, 2")
        e(f"s_add_u32 s{S_TMP}, s{S_TMP}, s{S_W}")
        e(f"s_and_b32 s{S_PA}, s{S_TMP}, 7")
        e(f"s_lshl_b32 s{S_PA}, s{S_PA}, 12")
        e(f"s_lshr_b32 s{S_TMP}, s{S_TMP}, 3")
        e(f"s_lshl_b32 s{S_TMP}, s{S_TMP}, 8")
        e(f"s_add_u32 s{S_TMP}, s{S_TMP}, s{S_PA}")
        for b in (S_E, S_F):
            e(f"s_add_u32 s{S_PA}, s{b}, s{S_TMP}")
            e(f"s_addc_u32 s{S_PA + 1}, s{b + 1}, 0")
            for o in range(0, 256, pfstride):
                e(f"s_load_dword s{S_PD}, s[{S_PA}:{S_PA + 1}], {o}")
    if "q" in pf:
        c("L2 prefetch of this head's Q")
        e(f"s_lshl_b32 s{S_TMP}, s2, 2")
        e(f"s_add_u32 s{S_TMP}, s{S_TMP}, s{S_W}")
        e(f"s_lshl_b32 s{S_TMP}, s{S_TMP}, 9")
        e(f"s_add_u32 s{S_PA}, s{S_Q}, s{S_TMP}")
        e(f"s_addc_u32 s{S_PA + 1}, s{S_Q + 1}, 0")
        for o in range(0, 512, pfstride):
            e(f"s_load_dword s{S_PD}, s[{S_PA}:{S_PA + 1}], {o}")
    def lane_bits(dst, src, lo, shifts, first):
        for k, sh in enumerate(shifts):
            e(f"v_bfe_u32 v{SCR}, v{src}, {lo + k}, 1")
            if first and k == 0:
                e(f"v_lshlrev_b32 v{dst}, {sh}, v{SCR}")
            else:
                e(f"v_lshl_add_u32 v{dst}, v{SCR}, {sh}, v{dst}")

    if dma:
        c("E/F go to a per-wave LDS image by LDS-DMA; lane&3 picks the lane group's 16 bytes")
        for srd, b in ((SRD_E, S_E), (SRD_F, S_F)):
            e(f"s_mov_b32 s{srd}, s{b}")
            e(f"s_mov_b32 s{srd + 1}, s{b + 1}")
            e(f"s_mov_b32 s{srd + 2}, 0x8000")
            e(f"s_mov_b32 s{srd + 3}, 0x20000")
        e(f"s_mul_i32 s{S_EB}, s{S_W}, {16 * BS}")
        e(f"s_add_u32 s{S_EB}, s{S_EB}, {LDS_E}")
        lane_bits(V_EFA, V_LANE, 0, [gb + 1 for gb in gbits], True)
        e(f"s_lshr_b32 s{S_TMP}, s{S_WB}, 7")
        e(f"v_add_u32 v{V_EFA}, s{S_TMP}, v{V_EFA}")
        if efmode == "dmaG":
            e(f"v_bfe_u32 v{SCR}, v{V_LANE}, 2, 2")
            e(f"v_lshl_add_u32 v{V_EFA}, v{SCR}, 8, v{V_EFA}")
            e(f"v_lshl_add_u32 v{V_EFA}, v{V_G}, 12, v{V_EFA}")
            e(f"v_add_u32 v{V_EFA + 1}, 0x4000, v{V_EFA}")
            e(f"v_lshrrev_b32 v{SCR}, 2, v{V_J}")
            e(f"v_mul_u32_u24 v{V_EB}, {BS}, v{SCR}")
            e(f"v_and_b32 v{SCR}, 3, v{V_J}")
            e(f"v_lshl_add_u32 v{V_EB}, v{SCR}, 8, v{V_EB}")
        else:
            e(f"v_lshrrev_b32 v{SCR}, 2, v{V_LANE}")
            e(f"v_lshl_add_u32 v{V_EFA}, v{SCR}, 8, v{V_EFA}")
            e(f"v_mul_u32_u24 v{V_EB}, {BS}, v{V_J}")
        e(f"v_lshl_add_u32 v{V_EB}, v{V_G}, 4, v{V_EB}")
        e(f"v_add_u32 v{V_EB}, s{S_EB}, v{V_EB}")
        e(f"s_mov_b32 s{S_SELL}, 0x05040100")
        e(f"s_mov_b32 s{S_SELH}, 0x07060302")
    else:
        c("E/F address: lane (r=l&15, g): (r<8 ? e : f) + (r&7)*4096 + 2*(row offset of w, g)")
        e(f"v_lshrrev_b32 v{SCR + 2}, 7, v{V_EFA}")
        e(f"v_cmp_gt_u32 vcc, 8, v{V_J}")
        e(f"v_mov_b32 v{V_EFA}, s{S_F}")
        e(f"v_mov_b32 v{V_EFA + 1}, s{S_F + 1}")
        e(f"v_mov_b32 v{SCR}, s{S_E}")
        e(f"v_mov_b32 v{SCR + 1}, s{S_E + 1}")
        e(f"v_cndmask_b32 v{V_EFA}, v{V_EFA}, v{SCR}, vcc")
        e(f"v_cndmask_b32 v{V_EFA + 1}, v{V_EFA + 1}, v{SCR + 1}, vcc")
        e(f"v_and_b32 v{SCR}, 7, v{V_J}")
        e(f"v_lshl_add_u32 v{SCR}, v{SCR}, 12, v{SCR + 2}")
        e(f"s_lshr_b32 s{S_TMP}, s{S_WB}, 7")
        e(f"v_add_u32 v{SCR}, s{S_TMP}, v{SCR}")
        e(f"v_add_co_u32 v{V_EFA}, vcc, v{V_EFA}, v{SCR}")
        e(f"s_mov_b32 s{S_SELL}, 0x05040100")
        e(f"s_mov_b32 s{S_SELH}, 0x07060302")
        e(f"v_addc_co_u32 v{V_EFA + 1}, vcc, 0, v{V_EFA + 1}, vcc")

    ef_issue, ef_move = {}, {}
    lagm = max(wins + [int(ch) for ch in wk]) + 2
    for u in range(16):
        if efmode == "dmaA":
            st = u // efper - (1 if efpro else 0)
        elif u < 4:
            st = -1 if efpro else u + ef0
        elif efthin >= 0:
            st = 8 * (u - 3) + efthin
        elif u < 8:
            st = 8 + ef0 + 4 * (u - 4) + efst % 4
        else:
            st = 8 * (u - 4) + efst
        ef_issue.setdefault(st, []).append(u)
        ef_move.setdefault(max(st, 0) + lagm + (u if (u < 4 and efpro) else 0) // 2, []).append(u)
    for u in ef_issue.get(-1, []):
        issue_ef(u)

    e(f"s_lshl_b32 s{S_TMP}, s2, 11")
    e(f"s_add_u32 s{SRD_Q}, s{S_Q}, s{S_TMP}")
    e(f"s_addc_u32 s{SRD_Q + 1}, s{S_Q + 1}, 0")
    e(f"s_mov_b32 s{SRD_Q + 2}, 2048")
    e(f"s_mov_b32 s{SRD_Q + 3}, 0x20000")
    e(f"s_add_u32 s{SRD_O}, s{S_O}, s{S_TMP}")
    e(f"s_addc_u32 s{SRD_O + 1}, s{S_O + 1}, 0")
    e(f"s_mov_b32 s{SRD_O + 2}, 2048")
    e(f"s_mov_b32 s{SRD_O + 3}, 0x20000")
    e(f"v_lshlrev_b32 v{V_A}, 8, v{V_J}")
    e(f"v_lshl_add_u32 v{V_A}, v{V_G}, 6, v{V_A}")
    if sites:
        c("early-issue duty per site from the XCD id and the wave index; affects load timing only")
        e(f"s_getreg_b32 s{S_TMP}, hwreg(HW_REG_XCC_ID, 0, 4)")
        e(f"s_bitcmp1_b32 s{S_TMP}, 0")
        if pe or po:
            sp = 8 // len(sites)
            inc = lambda p: 0 if not p else min(0xFFFFFFFF, -(-(sp << 32) // p))
            e(f"s_mov_b32 s{S_ACC}, {hex(inc(po))}")
            e(f"s_cselect_b32 s{S_INC}, s{S_ACC}, {hex(inc(pe))}")
        else:
            e(f"s_cselect_b32 s{S_INC}, {io}, {ie}")
            if i4:
                e(f"s_cmp_eq_u32 s{S_TMP}, 4")
                e(f"s_cselect_b32 s{S_ACC}, {i4}, 0")
                e(f"s_add_u32 s{S_INC}, s{S_INC}, s{S_ACC}")
            if ihi:
                e(f"s_cmp_ge_u32 s{S_TMP}, 4")
                e(f"s_cselect_b32 s{S_ACC}, {ihi}, 0")
                e(f"s_add_u32 s{S_INC}, s{S_INC}, s{S_ACC}")
            if iw:
                e(f"s_mul_i32 s{S_ACC}, s{S_W}, {iw}")
                e(f"s_add_u32 s{S_INC}, s{S_INC}, s{S_ACC}")
            e(f"s_min_u32 s{S_INC}, s{S_INC}, {den}")
            e(f"s_mul_i32 s{S_INC}, s{S_INC}, {hex(0xFFFFFFFF // den)}")
        e(f"s_mov_b32 s{S_ACC}, 0x80000000")
    if fixp:
        c("VCC = even XCD id: those dies issue one load a step early every few steps (load timing only)")
        e(f"s_getreg_b32 s{S_TMP}, hwreg(HW_REG_XCC_ID, 0, 1)")
        e(f"s_cmp_eq_u32 s{S_TMP}, 0")
        e("s_cselect_b64 vcc, -1, 0")
    if xb:
        c("number of extra early-issue sites for this XCD id (load timing only)")
        packed = sum(int(ch, 16) << (4 * k) for k, ch in enumerate(xb))
        e(f"s_getreg_b32 s{S_TMP}, hwreg(HW_REG_XCC_ID, 0, 3)")
        e(f"s_lshl_b32 s{S_TMP}, s{S_TMP}, 2")
        e(f"s_lshr_b32 s{S_INC}, {hex(packed)}, s{S_TMP}")
        e(f"s_and_b32 s{S_INC}, s{S_INC}, 15")
    c("LDS / output addresses of the tail")
    e(f"s_mul_i32 s{S_TMP}, s{S_W}, {WSTR}")
    e(f"v_and_b32 v{WA}, 1, v{V_G}")
    e(f"v_lshlrev_b32 v{WA}, 3, v{WA}")
    e(f"v_lshl_add_u32 v{WA}, v{V_J}, 4, v{WA}")
    e(f"v_add_u32 v{WA}, s{S_TMP}, v{WA}")
    c("lane groups 0,1 hold unused rows: their LDS writes go to a scratch copy of the buffer")
    e(f"v_lshrrev_b32 v{RA}, 1, v{V_G}")
    e(f"v_xor_b32 v{RA}, 1, v{RA}")
    e(f"v_mul_u32_u24 v{RA}, {NW * WSTR}, v{RA}")
    e(f"v_add_u32 v{WA}, v{WA}, v{RA}")
    e(f"v_and_b32 v{RA}, 3, v{V_J}")
    e(f"v_mul_u32_u24 v{RA}, {CSTR}, v{RA}")
    e(f"v_lshrrev_b32 v{OA}, 2, v{V_J}")
    e(f"v_lshl_add_u32 v{RA}, v{OA}, 4, v{RA}")
    e(f"v_mul_u32_u24 v{OA}, {WSTR}, v{V_G}")
    e(f"v_add_u32 v{RA}, v{RA}, v{OA}")
    e(f"s_lshl_b32 s{S_TMP}, s{S_W}, 6")
    e(f"v_add_u32 v{RA}, s{S_TMP}, v{RA}")
    e(f"v_lshlrev_b32 v{OA}, 8, v{V_J}")
    e(f"v_lshl_add_u32 v{OA}, v{V_G}, 4, v{OA}")
    e(f"v_add_u32 v{OA}, s{S_TMP}, v{OA}")
    stamp()

    frag_read, frag_wait, er_grp = set(), [None], [None]

    def ef_landed(tile):
        grp = (tile % T) >> 2
        return all(u in ef_done for u in (range(16) if efmode == "dmaA" else range(4 * grp, 4 * grp + 4)))

    def ef_ready(tile):
        return tile in frag_read if dma else ef_landed(tile)

    def read_frag(tile):
        grp, t01 = divmod(tile % T, 4)
        assert frag_wait[0] is None
        if efmode == "dmaG":
            if er_grp[0] != grp:
                e(f"v_add_u32 v{V_ER}, {4 * BS * grp}, v{V_EB}")
                er_grp[0] = grp
            va, o = V_ER, t01
        else:
            va, o = V_EB, 64 * grp + t01
        for h in range(2):
            e(f"ds_read2_b32 {ar(EF + 4 * (tile % 2) + 2 * h, 2)}, v{va} offset0:{o + 32 * h} offset1:{o + 32 * h + 16}")
        frag_read.add(tile)
        frag_wait[0] = tile

    def mfma(tile, cc):
        if "m" in abl:
            return
        ten, t = divmod(tile, T)
        assert ef_ready(tile), tile
        if dma and frag_wait[0] == tile:
            e("s_waitcnt lgkmcnt(0)")
            frag_wait[0] = None
        d = TT + 32 * (tile % 2) + 4 * cc
        a = ACC + 4 * cc
        f = ar(EF + 4 * (tile % 2 if dma else t), 4)
        src = "0" if t == 0 else vr(a, 4)
        if ten == 0:
            e(f"v_mfma_f32_16x16x32_bf16 {vr(a, 4)}, {vr(d, 4)}, {f}, {src}")
        else:
            e(f"v_mfma_f32_16x16x32_bf16 {vr(a, 4)}, {f}, {vr(d, 4)}, {src}")

    def perm(n, cc):
        if "p" in abl:
            return
        tile, m = n // 8, n % 8 - 4
        lo = RING + 4 * ((n - 4) % ring)
        if pairtail and n >= NL - 8:
            m = (n % 8) >> 1
            lo = RING + 4 * ((n - 1) % ring)
        hi = RING + 4 * (n % ring)
        sel = S_SELL if cc % 2 == 0 else S_SELH
        e(f"v_perm_b32 v{TT + 32 * (tile % 2) + 4 * cc + m}, v{hi + (cc >> 1)}, v{lo + (cc >> 1)}, s{sel}")

    def softmax():
        c("score reduction over waves + softmax")
        e("s_waitcnt lgkmcnt(0)")
        e("s_barrier")
        e(f"v_and_b32 v{V_A}, 7, v{V_LANE}")
        e(f"v_lshlrev_b32 v{V_A}, 4, v{V_A}")
        for w in range(4):
            for h in range(2):
                e(f"ds_read_b128 {vr(SCR + 8 * w + 4 * h, 4)}, v{V_A} offset:{LDS_S + w * 1024 + h * 256}")
        S0 = QR
        M = QR + 8
        e("s_waitcnt lgkmcnt(0)")
        for k in range(8):
            e(f"v_add_f32 v{SCR + k}, v{SCR + k}, v{SCR + 8 + k}")
            e(f"v_add_f32 v{SCR + 16 + k}, v{SCR + 16 + k}, v{SCR + 24 + k}")
        for k in range(8):
            e(f"v_add_f32 v{S0 + k}, v{SCR + k}, v{SCR + 16 + k}")
        e(f"v_max3_f32 v{M}, v{S0}, v{S0 + 1}, v{S0 + 2}")
        e(f"v_max3_f32 v{M}, v{M}, v{S0 + 3}, v{S0 + 4}")
        e(f"v_max3_f32 v{M}, v{M}, v{S0 + 5}, v{S0 + 6}")
        e(f"v_max_f32 v{M}, v{M}, v{S0 + 7}")
        c("128^-0.5 * log2(e)")
        e(f"s_mov_b32 s{S_TMP}, 0x3e0293ee")
        for k in range(8):
            e(f"v_sub_f32 v{S0 + k}, v{S0 + k}, v{M}")
        for k in range(8):
            e(f"v_mul_f32 v{S0 + k}, s{S_TMP}, v{S0 + k}")
        for k in range(8):
            e(f"v_exp_f32 v{S0 + k}, v{S0 + k}")
        e("s_nop 0")
        e(f"v_add_f32 v{M}, v{S0}, v{S0 + 1}")
        e(f"v_add_f32 v{M + 1}, v{S0 + 2}, v{S0 + 3}")
        e(f"v_add_f32 v{M + 2}, v{S0 + 4}, v{S0 + 5}")
        e(f"v_add_f32 v{M + 3}, v{S0 + 6}, v{S0 + 7}")
        e(f"v_add_f32 v{M}, v{M}, v{M + 1}")
        e(f"v_add_f32 v{M + 2}, v{M + 2}, v{M + 3}")
        e(f"v_add_f32 v{M}, v{M}, v{M + 2}")
        e(f"v_rcp_f32 v{M}, v{M}")
        e("s_nop 0")
        for k in range(8):
            e(f"v_mul_f32 v{S0 + k}, v{S0 + k}, v{M}")
        for k in range(4):
            e(f"v_cvt_pk_bf16_f32 v{P + k}, v{S0 + 2 * k}, v{S0 + 2 * k + 1}")

    pending = []
    did_softmax = False
    for n in range(NL):
        tile, i = divmod(n, 8)
        ten, t = divmod(tile, T)
        if i == 0:
            c(f"---- tile {tile}: {'KV'[ten]}{t}")
        site = i in sites or (fixp and n % fixp == fixo)
        xk = (n - xbo) // xbp if (xb and n >= xbo and (n - xbo) % xbp == 0) else -1
        xsite = 0 <= xk < max([int(ch, 16) for ch in xb] or [0])
        assert not (site and xsite)
        site = site or xsite
        if site and n > 0 and NL - (n + 1) > tailn and issued <= n + window(n + 1):
            if xsite:
                e(f"s_cmp_gt_u32 s{S_INC}, {xk}")
                e(f"s_cbranch_scc1 L_e{n}")
            elif fixp:
                e(f"s_cbranch_vccnz L_e{n}")
            else:
                e(f"s_add_u32 s{S_ACC}, s{S_ACC}, s{S_INC}")
                e(f"s_cbranch_scc1 L_e{n}")
            keep = list(g.vm)
            g.vwait(("d", n))
            g.vm = keep
            g.label(f"L_e{n}")
            issue(issued)
            issued += 1
        g.vwait(("d", n))
        if n == 0:
            stamp()
        if n == NL - 1:
            stamp(2)
        tgt = min(NL, n + 1 + window(n + 1), oldest_live(n) + ring)
        while issued < tgt:
            issue(issued)
            issued += 1
        for u in ef_issue.get(n, []):
            issue_ef(u)
        if n == qat and "q" not in abl:
            for m in range(4):
                g.vload(f"buffer_load_dwordx4 {vr(QR + 4 * m, 4)}, v{V_A}, s[{SRD_Q}:{SRD_Q + 3}], 0 offen offset:{m * 16}", ("q",))
        if issued == NL and not did_softmax:
            did_softmax = True
            stamp(0)
            softmax()
        if n == NL - 1:
            break
        for _ in range(2):
            if pending and ef_ready(pending[0][0]):
                mfma(*pending.pop(0))
        for u in ef_move.get(n, []):
            move_ef(u)
        if dma:
            nxt = len(frag_read)
            busy = any(p[0] == nxt - 2 for p in pending) or frag_wait[0] is not None
            if not busy and nxt < 2 * T and ef_landed(nxt) and n >= 8 * nxt + 5:
                read_frag(nxt)
        if tile == T:
            if i in (4, 5):
                if i == 4:
                    c("partial scores S_w^T[r][q] = kp_w . Q^T")
                    assert not pending
                    g.vwait(("q",))
                    e("s_nop 3")
                for m in (2 * (i - 4), 2 * (i - 4) + 1):
                    for k in range(4):
                        e(f"v_cvt_pk_bf16_f32 v{SCR + 4 + 4 * m + k}, v{ACC + 4 * (2 * k) + m}, v{ACC + 4 * (2 * k + 1) + m}")
            elif i == 6:
                e(f"s_lshl_b32 s{S_TMP}, s{S_W}, 10")
                e(f"v_lshlrev_b32 v{V_A}, 4, v{V_LANE}")
                for m in range(4):
                    src = "0" if m == 0 else vr(SCR, 4)
                    e(f"v_mfma_f32_16x16x32_bf16 {vr(SCR, 4)}, {vr(SCR + 4 + 4 * m, 4)}, {vr(QR + 4 * m, 4)}, {src}")
                e(f"v_add_u32 v{V_A}, s{S_TMP}, v{V_A}")
        if (i % 2 == 1) if (pairtail and n >= NL - 8) else (i >= 4):
            if i == 4 or (pairtail and n == NL - 7):
                assert all(p[0] != tile - 2 for p in pending)
            for cc in range(8):
                perm(n, cc)
        if i == 7:
            if tile == T:
                e(f"ds_write_b128 v{V_A}, {vr(SCR, 4)} offset:{LDS_S}")
            pending += [(tile, cc) for cc in range(8)]
            tr()

    c("---- tail: last k-pair, bf16 partial vp -> LDS, reduce over waves with MFMA against P")
    assert not pending
    tile = 2 * T - 1

    def cvt(cc, h):
        e(f"v_cvt_pk_bf16_f32 v{SCR + 2 * cc + h}, v{ACC + 4 * cc + 2 * h}, v{ACC + 4 * cc + 2 * h + 1}")

    def wr(cc):
        e(f"ds_write_b64 v{WA}, {vr(SCR + 2 * cc, 2)} offset:{LDS_V + cc * CSTR}")

    seq = [("p", 0), ("p", 1), ("p", 2), ("m", 0), ("p", 3), ("p", 4), ("m", 1), ("p", 5), ("p", 6), ("m", 2), ("p", 7),
           ("n", 0), ("m", 3)]
    for cc in range(4):
        seq += [("c", cc), ("d", cc), ("w", cc), ("m", cc + 4)]
    seq += [("c", 4), ("d", 4), ("w", 4), ("c", 5), ("d", 5), ("w", 5), ("n", 0), ("c", 6), ("d", 6), ("w", 6),
            ("c", 7), ("d", 7), ("w", 7)]
    pos = {}
    for k, (op, cc) in enumerate(seq):
        pos[(op, cc)] = k
        if op == "m":
            assert k - pos[("p", cc)] - 1 >= 2
        if op == "c":
            assert k - pos[("m", cc)] - 1 >= 8
        {"p": lambda x: perm(NL - 1, x), "m": lambda x: mfma(tile, x), "c": lambda x: cvt(x, 0), "d": lambda x: cvt(x, 1),
         "w": wr, "n": lambda x: e(f"s_nop {x}")}[op](cc)
    tr()
    e("s_waitcnt lgkmcnt(0)")
    stamp(2)
    e("s_barrier")
    stamp(2)
    if stamps and stampset == 2:
        e("s_waitcnt lgkmcnt(0)")
    e(f"ds_read_b128 {vr(TT, 4)}, v{RA} offset:{LDS_V}")
    e(f"ds_read_b128 {vr(TT + 4, 4)}, v{RA} offset:{LDS_V + 4 * CSTR}")
    e("s_waitcnt lgkmcnt(1)")
    e(f"v_mfma_f32_16x16x32_bf16 {vr(TT + 8, 4)}, {vr(TT, 4)}, {vr(P, 4)}, 0")
    e("s_waitcnt lgkmcnt(0)")
    e(f"v_mfma_f32_16x16x32_bf16 {vr(TT + 12, 4)}, {vr(TT + 4, 4)}, {vr(P, 4)}, 0")
    e("s_nop 5")
    e(f"v_cvt_pk_bf16_f32 v{TT + 16}, v{TT + 8}, v{TT + 9}")
    e(f"v_cvt_pk_bf16_f32 v{TT + 17}, v{TT + 10}, v{TT + 11}")
    e(f"v_cvt_pk_bf16_f32 v{TT + 18}, v{TT + 12}, v{TT + 13}")
    e(f"v_cvt_pk_bf16_f32 v{TT + 19}, v{TT + 14}, v{TT + 15}")
    e(f"buffer_store_dwordx4 {vr(TT + 16, 4)}, v{OA}, s[{SRD_O}:{SRD_O + 3}], 0 offen")
    if stamps:
        if stamps > 1:
            e("s_waitcnt vmcnt(0)")
        stamp(0)
        assert nstamp[0] == 6
        e("s_getreg_b32 s58, hwreg(HW_REG_HW_ID)")
        e("s_getreg_b32 s59, hwreg(HW_REG_XCC_ID)")
        e("s_waitcnt lgkmcnt(0)")
        e(f"s_mul_i32 s{S_TMP}, s2, {NW}")
        e(f"s_add_u32 s{S_TMP}, s{S_TMP}, s{S_W}")
        e(f"s_lshl_b32 s{S_TMP}, s{S_TMP}, 7")
        e(f"v_mov_b32 v{V_OFF}, s{S_TMP}")
        for i in range(20):
            e(f"v_mov_b32 v{RING + i}, s{S_ST + i}")
        if trace:
            e(f"s_lshl_b32 s{S_TMP}, s{S_TMP}, 1")
            e(f"s_add_u32 s{S_TMP}, s{S_TMP}, 0x1000000")
            e(f"v_lshl_add_u32 v{V_LANE}, v{V_LANE}, 2, s{S_TMP}")
            e(f"global_store_dword v{V_LANE}, v{V_TR}, s[{S_WS}:{S_WS + 1}]")
        e("s_mov_b64 exec, 1")
        for i in range(5):
            e(f"global_store_dwordx4 v{V_OFF}, {vr(RING + 4 * i, 4)}, s[{S_WS}:{S_WS + 1}] offset:{16 * i}")
    g.label("L_end")
    e("s_endpgm")

    out = HEADER
    out += f"; @launch grid=(256,1,1) block=({NW * 64},1,1) lds={lds}\n"
    out += '.amdgcn_target "amdgcn-amd-amdhsa--gfx950"\n.text\n'
    out += f".globl {NAME}\n.p2align 8\n.type {NAME},@function\n"
    out += "\n".join(g.lines) + "\n"
    out += f""".section .rodata,"a"
.p2align 6
.amdhsa_kernel {NAME}
  .amdhsa_next_free_vgpr {nv + na}
  .amdhsa_next_free_sgpr 80
  .amdhsa_accum_offset {nv}
  .amdhsa_group_segment_fixed_size 0
  .amdhsa_kernarg_size 64
  .amdhsa_user_sgpr_count 2
  .amdhsa_user_sgpr_kernarg_segment_ptr 1
  .amdhsa_system_sgpr_workgroup_id_x 1
  .amdhsa_float_denorm_mode_32 3
.end_amdhsa_kernel
"""
    return out


if __name__ == "__main__":
    for spec in sys.argv[1:]:
        name, _, kvs = spec.partition(":")
        kw = {}
        for kvp in filter(None, kvs.split(",")):
            k, v = kvp.split("=")
            strkeys = ("win", "sites", "wmap", "gmap", "wk", "xb")
            kw[k] = int(v) if (v.lstrip("-").isdigit() and k not in strkeys) else v.replace("+", " ").replace("none", "")
        path = name if name.endswith(".s") else f"var/{name}.s"
        open(path, "w").write(build(**kw))
```
